```python
import torch

def _softmax(x, axis=-1):
    return torch.softmax(x, dim=axis)
def _gelu(x):
    return torch.nn.functional.gelu(x, approximate="tanh")
def _silu(x):
    return torch.nn.functional.silu(x)
def _sigmoid(x):
    return torch.sigmoid(x)
def _layernorm(x, axis=-1, eps=1e-5):
    m = x.mean(dim=axis, keepdim=True)
    v = x.var(dim=axis, keepdim=True, unbiased=False)
    return (x - m) / torch.sqrt(v + eps)
def _scatter_add(tgt, idx, src, axis=0):
    return tgt.clone().index_add_(axis, idx, src)
def _segment_sum(src, seg, n):
    out = torch.zeros((n,) + src.shape[1:], dtype=src.dtype)
    return out.index_add_(0, seg, src)
def _pad(x, pw):
    flat = tuple(v for pair in reversed(pw) for v in pair)
    return torch.nn.functional.pad(x, flat)

kernel_name = 'standalone__mha_block_cached__near_ridge'

def setup_inputs():

    _w = (lambda a: (lambda t: t.to(torch.bfloat16) if t.is_floating_point() else t)(torch.as_tensor(a)))
    B, Sq, D = 16, 112, 576
    H, Sk, Dh = 32, 1024, 128
    return {
        "x": _w((lambda *s: torch.randn(*s, dtype=torch.bfloat16) * 0.8)(B, Sq, D)),
        "k_cache": _w((lambda *s: torch.randn(*s, dtype=torch.bfloat16) * 0.8)(B, H, Sk, Dh)),
        "v_cache": _w((lambda *s: torch.randn(*s, dtype=torch.bfloat16) * 0.05)(B, H, Sk, Dh)),
        "wq": _w((lambda *s: torch.randn(*s, dtype=torch.bfloat16) * 0.8)(D, H * Dh) * (D ** -0.5)),
        "wo": _w((lambda *s: torch.randn(*s, dtype=torch.bfloat16) * 0.05)(H * Dh, D) * ((H * Dh) ** -0.5)),
    }

def reference(x, k_cache, v_cache, wq, wo):
    B, Sq, D = x.shape
    H, Dh = 32, 128
    q = (lambda x, *d: x.permute(*d))((x @ wq).reshape(B, Sq, H, Dh), 0, 2, 1, 3)
    scores = torch.einsum("bhqd,bhkd->bhqk", q, k_cache) * (Dh ** -0.5)
    p = _softmax(scores, axis=-1)
    o = torch.einsum("bhqk,bhkd->bhqd", p, v_cache)
    return (lambda x, *d: x.permute(*d))(o, 0, 2, 1, 3).reshape(B, Sq, H * Dh) @ wo
```

```python
class Asm:
    def __init__(s): s.L=[]
    def __call__(s, t):
        for l in t.strip().split('\n'): s.L.append('    '+l.strip() if not l.strip().endswith(':') else l.strip())
    def ext(s, lst):
        for t in lst: s(t)
    def text(s): return '\n'.join(s.L)+'\n'
def vr(a,n): return f'v[{a}:{a+n-1}]'
def mfma(d,a,b,c=None):
    cs = '0' if c is None else vr(c,16)
    return f'v_mfma_f32_32x32x16_bf16 {vr(d,16)}, {vr(a,4)}, {vr(b,4)}, {cs}'
def interleave(main, fill, start=0, end=None):
    end = len(main) if end is None else end
    n = end-start; out=[]; k=0
    for i,m in enumerate(main):
        out.append(m)
        if start<=i<end:
            tgt = (len(fill)*(i-start+1)+n-1)//n
            while k<tgt: out.append(fill[k]); k+=1
    assert k==len(fill)
    return out
def srd(a, d, lo, hi, nbytes):
    a(f's_mov_b32 s{d}, s{lo}\ns_mov_b32 s{d+1}, s{hi}\ns_mov_b32 s{d+2}, {nbytes}\ns_mov_b32 s{d+3}, 0x00020000')
def desc(name, vg, sg=96):
    return f'''.section .rodata,"a"
.p2align 6
.amdhsa_kernel {name}
  .amdhsa_next_free_vgpr {vg}
  .amdhsa_next_free_sgpr {sg}
  .amdhsa_accum_offset {min(256,(vg+3)//4*4)}
  .amdhsa_group_segment_fixed_size 0
  .amdhsa_kernarg_size 64
  .amdhsa_user_sgpr_count 2
  .amdhsa_user_sgpr_kernarg_segment_ptr 1
  .amdhsa_system_sgpr_workgroup_id_x 1
.end_amdhsa_kernel
'''
def head(name):
    return f'.text\n.globl {name}\n.p2align 8\n.type {name},@function\n{name}:\n'
```

```python
from common import *
import struct, math
def f2u(x): return struct.unpack('<I', struct.pack('<f', x))[0]
C = (128**-0.5)*math.log2(math.e)
VKS=1
VVS=5; VWS=6; VXS=7
VKR=8
VVR=16
VM=20; VMC=21; VL=22; VT0=23; VT1=24; VT2=25; VL2=26; VOS=27
Q=32; O=64; S=128; P=160; A=176
XB=[32,48,128,144]
SX=8; SK=12; SV=16; SW=20; SO=24
def gen(opt):
    NT = ' nt' if opt.get('nt',1) else ''
    a=Asm()
    a('''s_cmp_ge_u32 s2, 512
    s_cbranch_scc1 K1_END
    s_load_dwordx4 s[36:39], s[0:1], 0
    s_load_dwordx4 s[40:43], s[0:1], 16
    s_load_dwordx2 s[44:45], s[0:1], 56
    s_and_b32 s3, s2, 7
    s_lshr_b32 s4, s2, 3
    s_and_b32 s5, s3, 1
    s_lshl_b32 s5, s5, 3
    s_and_b32 s6, s4, 7
    s_add_u32 s5, s5, s6
    s_lshr_b32 s6, s3, 1
    s_lshl_b32 s6, s6, 3
    s_lshr_b32 s7, s4, 3
    s_add_u32 s6, s6, s7''')
    a(f'''v_lshrrev_b32 v28, 6, v0
    v_and_b32 v0, 63, v0
    v_readfirstlane_b32 s7, v28
    s_mov_b32 s28, {hex(f2u(C))}
    s_mov_b32 s29, {hex(f2u(8.0/C))}
    s_lshl_b32 s30, s7, 12
    v_lshrrev_b32 v29, 4, v0
    v_and_b32 v30, 15, v0''')
    a(f'''v_lshlrev_b32 v31, 2, v29
    v_xor_b32 v31, v31, v30
    v_lshlrev_b32 v31, 4, v31
    v_lshl_add_u32 v28, v28, 4, v29
    v_lshl_add_u32 v{VWS}, v28, 13, v31
    v_lshl_add_u32 v{VVS}, v28, 8, v31''')
    for j in range(4):
        a(f'''v_add_u32 v31, {4*j}, v29
        v_xor_b32 v31, v31, v30
        v_lshlrev_b32 v31, 4, v31
        v_lshl_add_u32 v{VKS+j}, v28, 8, v31''')
    a(f'''v_and_b32 v28, 31, v0
    v_lshrrev_b32 v31, 5, v0
    s_lshl_b32 s34, s7, 5
    v_add_u32 v{VT0}, s34, v28
    v_mul_u32_u24 v{VXS}, 1152, v{VT0}
    v_lshl_add_u32 v{VXS}, v31, 4, v{VXS}
    v_lshlrev_b32 v{VOS}, 5, v{VT0}
    v_lshl_add_u32 v{VOS}, v31, 4, v{VOS}
    v_cmp_gt_u32 vcc, 112, v{VT0}
    v_mov_b32 v{VT1}, 0x7ffffff0
    s_nop 0
    v_cndmask_b32 v{VOS}, v{VT1}, v{VOS}, vcc
    s_waitcnt lgkmcnt(0)
    s_mul_i32 s34, s5, 129024
    s_add_u32 s36, s36, s34
    s_addc_u32 s37, s37, 0
    s_lshl_b32 s34, s5, 5
    s_add_u32 s34, s34, s6
    s_lshl_b32 s34, s34, 18
    s_add_u32 s38, s38, s34
    s_addc_u32 s39, s39, 0
    s_add_u32 s40, s40, s34
    s_addc_u32 s41, s41, 0
    s_lshl_b32 s34, s6, 8
    s_add_u32 s42, s42, s34
    s_addc_u32 s43, s43, 0
    s_mul_i32 s34, s6, {8*57344}
    s_mul_i32 s35, s5, {112*32}
    s_add_u32 s34, s34, s35
    s_add_u32 s44, s44, s34
    s_addc_u32 s45, s45, 0''')
    srd(a,SX,36,37,129024); srd(a,SK,38,39,262144); srd(a,SV,40,41,262144)
    srd(a,SW,42,43,575*8192+256); srd(a,SO,44,45,7*57344+112*32)
    def dmaW(c):
        r=[f's_add_u32 m0, s30, {(c%4)*16384}']
        for j in range(4):
            r+= [f's_mov_b32 s34, {c*64*8192+j*(4*8192-1024)}', f'buffer_load_dwordx4 v{VWS}, s[{SW}:{SW+3}], s34 offen offset:{1024*j} lds']
        for s in range(4):
            r+= [f'buffer_load_dwordx4 {vr(XB[c%4]+4*s,4)}, v{VXS}, s[{SX}:{SX+3}], 0 offen offset:{c*128+s*32}']
        return r
    def dmaK(slot):
        return [f's_add_u32 m0, s30, {slot*16384}','s_nop 0']+[f'buffer_load_dwordx4 v{VKS+j}, s[{SK}:{SK+3}], s31 offen offset:{1024*j}{NT} lds' for j in range(4)]+['s_add_u32 s31, s31, 16384']
    def dmaV(slot):
        return [f's_add_u32 m0, s30, {slot*16384}','s_nop 0']+[f'buffer_load_dwordx4 v{VVS}, s[{SV}:{SV+3}], s32 offen offset:{1024*j}{NT} lds' for j in range(4)]+['s_add_u32 s32, s32, 16384']
    for c in range(3): a.ext(dmaW(c))
    a('s_mov_b32 s31, 0\ns_mov_b32 s32, 0')
    a(f'''v_and_b32 v{VT0}, 0x13, v28
    v_bfe_u32 v{VT1}, v28, 2, 1
    v_lshl_or_b32 v{VT0}, v{VT1}, 3, v{VT0}
    v_bfe_u32 v{VT1}, v28, 3, 1
    v_lshl_or_b32 v{VT0}, v{VT1}, 2, v{VT0}
    v_and_b32 v{VT1}, 15, v{VT0}
    v_xor_b32 v{VT1}, v{VT1}, v31''')
    for s in range(8):
        a(f'''v_xor_b32 v{VT2}, {2*s}, v{VT1}
        v_lshlrev_b32 v{VT2}, 4, v{VT2}
        v_lshl_add_u32 v{VKR+s}, v{VT0}, 8, v{VT2}''')
    a(f'''v_lshrrev_b32 v{VT0}, 2, v30
    v_and_b32 v{VT1}, 1, v0
    v_bfe_u32 v{VT2}, v0, 1, 1
    v_lshl_or_b32 v{VT1}, v{VT1}, 1, v{VT2}
    v_lshlrev_b32 v{VT1}, 3, v{VT1}
    v_and_b32 v{VT2}, 1, v29
    v_lshl_or_b32 v{VT1}, v{VT2}, 5, v{VT1}
    v_lshl_add_u32 v{VT2}, v31, 3, v{VT0}
    v_lshl_add_u32 v{VT1}, v{VT2}, 8, v{VT1}''')
    for db in range(4):
        a(f'''v_xor_b32 v{VT2}, {db}, v{VT0}
        v_lshl_add_u32 v{VVR+db}, v{VT2}, 6, v{VT1}''')
    def trreads(slot):
        r=[]
        for m in range(4):
            for db in range(4):
                for u in range(2):
                    r.append(f'ds_read_b64_tr_b16 {vr(A+(m*4+db)*4+2*u,2)}, v{VVR+db} offset:{slot*16384+(16*m+4*u)*256}')
        return r
    for c in range(9):
        later = sum(8 if i<9 else 4 for i in (c+1,c+2))
        a(f's_waitcnt vmcnt({later})\ns_barrier')
        n=c+3
        rd=trreads(c%4)
        a.ext(rd[:8])
        a.ext(dmaW(n) if n<9 else (dmaK(n%4) if n%2 else dmaV(n%4)))
        for m in range(4):
            if m<3: a.ext(rd[8*(m+1):8*(m+2)])
            a(f's_waitcnt lgkmcnt({8 if m<3 else 0})')
            for db in range(4):
                a(mfma(O+16*db, A+(m*4+db)*4, XB[c%4]+4*m, None if (c==0 and m==0) else O+16*db))
    a('s_nop 15')
    for db in range(4):
        for i in range(8):
            a(f'v_cvt_pk_bf16_f32 v{Q+db*8+i}, v{O+db*16+2*i}, v{O+db*16+2*i+1}')
    for i in range(64): a(f'v_mov_b32 v{O+i}, 0')
    a(f'v_mov_b32 v{VM}, 0xff800000\nv_mov_b32 v{VL}, 0\nv_mov_b32 v{VL2}, 0\nv_mov_b32 v{VMC}, 0\ns_mov_b32 s33, 7')
    def maxes(kb, first):
        r=[]; b=S+16*kb
        if first: r.append(f'v_max3_f32 v{VT0}, v{b}, v{b+1}, v{b+2}'); r.append(f'v_max_f32 v{VT0}, v{VT0}, v{b+3}'); i0=4
        else: i0=0
        for i in range(i0,16,2): r.append(f'v_max3_f32 v{VT0}, v{VT0}, v{b+i}, v{b+i+1}')
        return r
    def exps(kb):
        r=[]; b=S+16*kb
        for i in range(0,16,2):
            r+= [f'v_fma_f32 v{b+i}, v{b+i}, s28, v{VMC}', f'v_fma_f32 v{b+i+1}, v{b+i+1}, s28, v{VMC}', f'v_exp_f32 v{b+i}, v{b+i}', f'v_exp_f32 v{b+i+1}, v{b+i+1}']
            if i>=2: r.append(f'v_cvt_pk_bf16_f32 v{P+8*kb+i//2-1}, v{b+i-2}, v{b+i-1}')
        r+=['s_nop 0', f'v_cvt_pk_bf16_f32 v{P+8*kb+7}, v{b+14}, v{b+15}']
        return r
    def sums():
        return [f'v_add_f32 v{VL if i%2 else VL2}, v{VL if i%2 else VL2}, v{S+i}' for i in range(32)]
    uid=[0]
    def step(ks, vs, wk, dk, wv, dv):
        a(f's_waitcnt vmcnt({wk})\ns_barrier')
        rd=[f'ds_read_b128 {vr(A+(kb*8+s)*4,4)}, v{VKR+s} offset:{ks*16384+kb*8192}' for kb in range(2) for s in range(8)]
        a.ext(rd[:8])
        if dk: a.ext(dmaV((ks+3)%4))
        a.ext(rd[8:12])
        m0=[]
        for s in range(8):
            t=''
            if s<4: t=rd[12+s]+'\n'
            t+=f's_waitcnt lgkmcnt({12 if s<4 else 15-s})\n'
            m0.append(t+mfma(S, A+s*4, Q+s*4, None if s==0 else S))
        a.ext(m0)
        m1=[f's_waitcnt lgkmcnt({7-s})\n'+mfma(S+16, A+(8+s)*4, Q+s*4, None if s==0 else S+16) for s in range(8)]
        a.ext(interleave(m1, maxes(0,True), 3, 8))
        a(f's_waitcnt vmcnt({wv})\ns_barrier')
        rd=trreads(vs)
        a.ext(rd[:12])
        if dv: a.ext(dmaK((vs+3)%4))
        a.ext(maxes(1,False))
        uid[0]+=1
        a(f'''v_mov_b32 v{VT1}, v{VT0}
        {rd[12]}
        {rd[13]}
        v_permlane32_swap_b32 v{VT0}, v{VT1}
        {rd[14]}
        {rd[15]}
        v_max_f32 v{VT0}, v{VT0}, v{VT1}
        v_sub_f32 v{VT1}, v{VT0}, v{VM}
        v_cmp_lt_f32 vcc, s29, v{VT1}
        s_cbranch_vccz K1_SKIP{uid[0]}
        v_max_f32 v{VT0}, v{VT0}, v{VM}
        v_sub_f32 v{VT1}, v{VM}, v{VT0}
        v_mul_f32 v{VT1}, s28, v{VT1}
        v_exp_f32 v{VT1}, v{VT1}
        v_mov_b32 v{VM}, v{VT0}
        v_mul_f32 v{VMC}, s28, v{VT0}
        v_sub_f32 v{VMC}, 0, v{VMC}
        v_mul_f32 v{VL}, v{VL}, v{VT1}
        v_mul_f32 v{VL2}, v{VL2}, v{VT1}''')
        for i in range(64): a(f'v_mul_f32 v{O+i}, v{O+i}, v{VT1}')
        a(f'K1_SKIP{uid[0]}:')
        a.ext(interleave(exps(0), rd[16:32], 0, 32))
        pv=[mfma(O+16*db, A+(m*4+db)*4, P+4*m, O+16*db) for m in range(4) for db in range(4)]
        a('s_waitcnt lgkmcnt(15)\ns_nop 0')
        a.ext(interleave(pv[:8], exps(1), 0, 8))
        a('s_waitcnt lgkmcnt(0)\ns_nop 0')
        a.ext(interleave(pv[8:], sums(), 0, 8))
    a('K1_LOOP:')
    step(1,2,8,1,8,1); step(3,0,8,1,8,1)
    a('s_sub_u32 s33, s33, 1\ns_cmp_lg_u32 s33, 0\ns_cbranch_scc1 K1_LOOP')
    step(1,2,8,1,8,0); step(3,0,4,0,0,0)
    a(f'''v_add_f32 v{VL}, v{VL}, v{VL2}
    v_mov_b32 v{VT1}, v{VL}
    s_nop 1
    v_permlane32_swap_b32 v{VL}, v{VT1}
    s_nop 1
    v_add_f32 v{VL}, v{VL}, v{VT1}
    v_rcp_f32 v{VL}, v{VL}
    s_nop 7''')
    for db in range(4):
        for m in range(2):
            b=O+db*16+8*m
            for i in range(8): a(f'v_mul_f32 v{b+i}, v{b+i}, v{VL}')
            for i in range(4): a(f'v_cvt_pk_bf16_f32 v{S+(db*2+m)*4+i}, v{b+2*i}, v{b+2*i+1}')
            a(f's_mov_b32 s34, {(db*2+m)*57344}\nbuffer_store_dwordx4 {vr(S+(db*2+m)*4,4)}, v{VOS}, s[{SO}:{SO+3}], s34 offen')
    a('K1_END:\ns_endpgm')
    return a.text()
```

```python
from common import *
VWS=1; VBS=2; VAR=3
VRW=5; VOS=6
ACC=16; A=80; B=112
SWO=8; SO=12; SOUT=16
def gen(opt):
    D=opt.get('d2',4)
    a=Asm()
    a('''s_cmp_ge_u32 s2, 256
    s_cbranch_scc1 K2_END
    s_and_b32 s3, s2, 7
    s_lshr_b32 s4, s2, 3
    s_lshl_b32 s3, s3, 5
    s_add_u32 s3, s3, s4
    s_cmp_ge_u32 s3, 252
    s_cbranch_scc1 K2_END
    s_load_dwordx4 s[36:39], s[0:1], 32
    s_load_dwordx2 s[44:45], s[0:1], 56
    s_mul_i32 s4, s3, 7282
    s_lshr_b32 s4, s4, 16
    s_mul_i32 s5, s4, 9
    s_sub_u32 s5, s3, s5
    v_lshrrev_b32 v8, 6, v0
    v_and_b32 v0, 63, v0
    v_readfirstlane_b32 s7, v8''')
    a(f'''v_lshrrev_b32 v9, 3, v0
    v_bfe_u32 v10, v0, 4, 1
    v_lshlrev_b32 v10, 2, v10
    v_and_b32 v11, 7, v0
    v_xor_b32 v10, v10, v11
    v_mul_u32_u24 v{VWS}, 1152, v9
    v_lshl_add_u32 v{VWS}, v10, 4, v{VWS}
    v_and_b32 v9, 31, v0
    v_lshrrev_b32 v10, 5, v0
    v_lshlrev_b32 v{VBS}, 5, v9
    v_lshl_add_u32 v{VBS}, v10, 4, v{VBS}
    s_lshl_b32 s30, s7, 14
    s_waitcnt lgkmcnt(0)
    s_mul_i32 s34, s7, {512*1152}
    s_lshl_b32 s35, s5, 7
    s_add_u32 s34, s34, s35
    s_add_u32 s36, s36, s34
    s_addc_u32 s37, s37, 0
    s_mul_i32 s34, s7, {32*57344}
    s_lshl_b32 s33, s4, 11
    s_add_u32 s34, s34, s33
    s_add_u32 s44, s44, s34
    s_addc_u32 s45, s45, 0
    s_mul_i32 s34, s4, {64*1152}
    s_add_u32 s34, s34, s35
    s_add_u32 s38, s38, s34
    s_addc_u32 s39, s39, 0''')
    srd(a,SWO,36,37,511*1152+128); srd(a,SO,44,45,31*57344+2048); srd(a,SOUT,38,39,63*1152+128)
    def issue(c):
        r=[f's_add_u32 m0, s30, {(c%D)*4096}']
        for j in range(4):
            r+=[f's_mov_b32 s34, {c*32*1152+j*(8*1152-1024)}', f'buffer_load_dwordx4 v{VWS}, s[{SWO}:{SWO+3}], s34 offen offset:{1024*j} lds']
        for ks in range(2):
            r+=[f's_mov_b32 s34, {(2*c+ks)*57344}']
            for mb in range(2):
                r+=[f'buffer_load_dwordx4 {vr(B+(c%D)*16+(ks*2+mb)*4,4)}, v{VBS}, s[{SO}:{SO+3}], s34 offen offset:{1024*mb}']
        return r
    for c in range(D-1): a.ext(issue(c))
    a(f'''v_bfe_u32 v11, v0, 2, 2
    v_and_b32 v12, 1, v0
    v_bfe_u32 v13, v0, 1, 1
    v_lshl_or_b32 v12, v12, 1, v13
    v_lshlrev_b32 v12, 3, v12
    v_bfe_u32 v13, v0, 4, 1
    v_lshl_or_b32 v12, v13, 5, v12
    v_lshl_add_u32 v13, v10, 3, v11
    v_lshl_add_u32 v12, v13, 7, v12
    v_add_u32 v12, s30, v12
    v_lshrrev_b32 v11, 1, v11
    v_lshl_add_u32 v{VAR}, v11, 6, v12
    v_xor_b32 v11, 1, v11
    v_lshl_add_u32 v{VAR+1}, v11, 6, v12
    v_lshlrev_b32 v{VRW}, 4, v0
    s_lshr_b32 s34, s7, 1
    s_and_b32 s34, s34, 1
    s_mul_i32 s34, s34, {32*1152}
    s_lshr_b32 s35, s7, 2
    s_lshl_b32 s35, s35, 6
    s_add_u32 s34, s34, s35
    s_and_b32 s35, s7, 1
    s_lshl_b32 s35, s35, 5
    s_add_u32 s34, s34, s35
    v_mul_u32_u24 v{VOS}, 1152, v9
    v_lshl_add_u32 v{VOS}, v10, 4, v{VOS}
    v_add_u32 v{VOS}, s34, v{VOS}''')
    def reads(c):
        return [f'ds_read_b64_tr_b16 {vr(A+(c%2)*16+(ks*2+nb)*4+2*u,2)}, v{VAR+nb} offset:{(c%D)*4096+(16*ks+4*u)*128}' for ks in range(2) for nb in range(2) for u in range(2)]
    for c in range(16):
        n=min(15,c+D-2)-c
        a(f's_waitcnt vmcnt({8*n})')
        a.ext(reads(c))
        if c+D-1<16: a.ext(issue(c+D-1))
        for ks in range(2):
            a(f's_waitcnt lgkmcnt({4 if ks==0 else 0})')
            for nb in range(2):
                for mb in range(2):
                    d=ACC+(nb*2+mb)*16
                    a(mfma(d, A+(c%2)*16+(ks*2+nb)*4, B+(c%D)*16+(ks*2+mb)*4, None if (c==0 and ks==0) else d))
    a(f'v_add_u32 v7, s30, v{VRW}\ns_lshl_b32 s34, s7, 11\nv_add_u32 v{VRW}, s34, v{VRW}\nv_add_u32 v8, 0x10000, v{VRW}\ns_nop 7')
    for i in range(16): a(f'ds_write_b128 v7, {vr(ACC+4*i,4)} offset:{1024*i}')
    a('s_waitcnt lgkmcnt(0)\ns_barrier')
    for w in range(8):
        for i in range(2):
            a(f'ds_read_b128 {vr(ACC+w*8+i*4,4)}, v{VRW if w<4 else 8} offset:{(w%4)*16384+1024*i}')
    for w in range(1,8):
        a(f's_waitcnt lgkmcnt({14-2*w})')
        for i in range(8): a(f'v_add_f32 v{ACC+i}, v{ACC+i}, v{ACC+w*8+i}')
    for i in range(4): a(f'v_cvt_pk_bf16_f32 v{A+i}, v{ACC+2*i}, v{ACC+2*i+1}')
    a(f'buffer_store_dwordx4 {vr(A,4)}, v{VOS}, s[{SOUT}:{SOUT+3}], 0 offen')
    a('K2_END:\ns_endpgm')
    return a.text(), B+16*D
```

```python
import sys, json, importlib
from common import *
import k1, k2
N='standalone__mha_block_cached__near_ridge'
def build(opt, path):
    ref=open(f'cdna_kernels/{N}.s.ref').read().split('\n')
    hdr='\n'.join(ref[:9])+'\n'
    t2,vg2=k2.gen(opt)
    L=[]
    for k in opt.get('list','12'):
        if k=='1': L.append(f'; @launch kernel={N}_kernel grid=(512,1,1) block=(256,1,1) lds={opt.get("lds1",65536)}')
        else: L.append(f'; @launch kernel=oproj_kernel grid=(256,1,1) block=(512,1,1) lds=131072')
    s=hdr+'\n'.join(L)+'\n.amdgcn_target "amdgcn-amd-amdhsa--gfx950"\n'
    s+=head(N+'_kernel')+k1.gen(opt)+head('oproj_kernel')+t2+desc(N+'_kernel',256)+desc('oproj_kernel',vg2)
    open(path,'w').write(s)
if __name__=='__main__':
    opt=json.loads(sys.argv[1]) if len(sys.argv)>1 else {}
    build(opt, sys.argv[2] if len(sys.argv)>2 else f'cdna_kernels/{N}.s')
```
